```python
import torch

def _softmax(x, axis=-1):
    return torch.softmax(x, dim=axis)

def _gelu(x):
    return torch.nn.functional.gelu(x, approximate='tanh')

def _silu(x):
    return torch.nn.functional.silu(x)

def _sigmoid(x):
    return torch.sigmoid(x)

def _layernorm(x, axis=-1, eps=1e-05):
    m = x.mean(dim=axis, keepdim=True)
    v = x.var(dim=axis, keepdim=True, unbiased=False)
    return (x - m) / torch.sqrt(v + eps)

def _scatter_add(tgt, idx, src, axis=0):
    return tgt.clone().index_add_(axis, idx, src)

def _segment_sum(src, seg, n):
    out = torch.zeros((n,) + src.shape[1:], dtype=src.dtype)
    return out.index_add_(0, seg, src)

def _pad(x, pw):
    flat = tuple((v for pair in reversed(pw) for v in pair))
    return torch.nn.functional.pad(x, flat)
kernel_name = 'interleave_layers__memory_aug_recurrent_mem_tr__swiglu_ffn__prompt'

def setup_inputs():

    _w = lambda a: (lambda t: t.to(torch.bfloat16) if t.is_floating_point() else t)(torch.as_tensor(a))

    def _A_setup():
        B, S, Dm = (1, 2048, 512)
        H, Dh = (32, 128)
        M, seg = (8, 32)
        seg = min(seg, S)
        S = S // seg * seg
        return {'x': _w((lambda *s: torch.randn(*s, dtype=torch.bfloat16) * 0.05)(B, S, Dm)), 'mem0': _w((lambda *s: torch.randn(*s, dtype=torch.bfloat16) * 0.8)(B, M, Dm)), 'Wq': _w((lambda *s: torch.randn(*s, dtype=torch.bfloat16) * 0.8)(Dm, H, Dh) * Dm ** (-0.5)), 'Wk': _w((lambda *s: torch.randn(*s, dtype=torch.bfloat16) * 0.8)(Dm, H, Dh) * Dm ** (-0.5)), 'Wv': _w((lambda *s: torch.randn(*s, dtype=torch.bfloat16) * 0.8)(Dm, H, Dh) * Dm ** (-0.5)), 'Wo': _w((lambda *s: torch.randn(*s, dtype=torch.bfloat16) * 0.8)(H, Dh, Dm) * (H * Dh) ** (-0.5)), 'seg_len': seg}
    _A_in = _A_setup()

    def _B_setup():
        B, S, D, F = (1, 2048, 512, 1376)
        return {'x': _w((lambda *s: torch.randn(*s, dtype=torch.bfloat16) * 0.05)(B, S, D)), 'w_gate': _w((lambda *s: torch.randn(*s, dtype=torch.bfloat16) * 0.05)(D, F)), 'w_up': _w((lambda *s: torch.randn(*s, dtype=torch.bfloat16) * 0.05)(D, F)), 'w_down': _w((lambda *s: torch.randn(*s, dtype=torch.bfloat16) * 0.05)(F, D))}
    _B_in = _B_setup()
    return {'A_x': _A_in['x'], 'A_mem0': _A_in['mem0'], 'A_Wq': _A_in['Wq'], 'A_Wk': _A_in['Wk'], 'A_Wv': _A_in['Wv'], 'A_Wo': _A_in['Wo'], 'A_seg_len': _A_in['seg_len'], 'B_x': _B_in['x'], 'B_w_gate': _B_in['w_gate'], 'B_w_up': _B_in['w_up'], 'B_w_down': _B_in['w_down']}

def reference(A_x, A_mem0, A_Wq, A_Wk, A_Wv, A_Wo, A_seg_len, B_x, B_w_gate, B_w_up, B_w_down):

    def _A_ref(x, mem0, Wq, Wk, Wv, Wo, seg_len):
        B, S, Dm = x.shape
        H, Dh = (Wq.shape[1], Wq.shape[2])
        M = mem0.shape[1]
        scale = Dh ** (-0.5)
        n_seg = S // seg_len
        L = M + seg_len
        idx = torch.arange(L)
        mask = (idx[:, None] < M) | (idx[:, None] >= idx[None, :])
        mem = mem0
        outs = []
        for s in range(n_seg):
            xs = x[:, s * seg_len:(s + 1) * seg_len, :].clone()
            h = torch.concatenate([mem, xs], axis=1)
            q = torch.einsum('btd,dhe->bhte', h, Wq)
            k = torch.einsum('btd,dhe->bhte', h, Wk)
            v = torch.einsum('btd,dhe->bhte', h, Wv)
            scores = torch.einsum('bhqe,bhke->bhqk', q, k) * scale
            scores = torch.where(mask[None, None], scores, -1000000000.0)
            p = _softmax(scores, axis=-1)
            o = torch.einsum('bhqk,bhke->bhqe', p, v)
            o = torch.einsum('bhte,hed->btd', o, Wo)
            mem = o[:, :M, :].clone()
            outs.append(o[:, M:, :])
        return torch.concatenate(outs, axis=1)

    def _B_ref(x, w_gate, w_up, w_down):
        g = _silu(x @ w_gate)
        u = x @ w_up
        return g * u @ w_down
    x = A_x
    x = x + _A_ref(_layernorm(x, axis=-1), A_mem0, A_Wq, A_Wk, A_Wv, A_Wo, A_seg_len)
    x = x + _B_ref(_layernorm(x, axis=-1), B_w_gate, B_w_up, B_w_down)
    x = x + _A_ref(_layernorm(x, axis=-1), A_mem0, A_Wq, A_Wk, A_Wv, A_Wo, A_seg_len)
    x = x + _B_ref(_layernorm(x, axis=-1), B_w_gate, B_w_up, B_w_down)
    return x
```

```python
class Asm:
    def __init__(self):
        self.lines = []
        self._uid = 0
    def __call__(self, s):
        for ln in s.strip('\n').split('\n'):
            self.lines.append('    ' + ln.strip())
    def label(self, name):
        self.lines.append(name + ':')
    def raw(self, s):
        self.lines.append(s)
    def uid(self, p='L'):
        self._uid += 1
        return f'{p}_{self._uid}'
    def nop(self, n):
        while n > 0:
            k = min(n, 16)
            self(f's_nop {k-1}')
            n -= k
    def text(self):
        return '\n'.join(self.lines) + '\n'

def v(a, n=1):
    return f'v{a}' if n == 1 else f'v[{a}:{a+n-1}]'
def a(i, n=1):
    return f'a{i}' if n == 1 else f'a[{i}:{i+n-1}]'
def s(i, n=1):
    return f's{i}' if n == 1 else f's[{i}:{i+n-1}]'
```

```python
from asmlib import *
import layout as L

sWG, sW = 2, 3
SRD_X, SRD_M0, SRD_WQ, SRD_WK, SRD_WV, SRD_WO, SRD_WG, SRD_WU, SRD_WD, SRD_OUT, SRD_DBG, SRD_WS = \
    8, 12, 16, 20, 24, 28, 32, 36, 40, 44, 48, 52
SRD_WA, SRD_WB = 56, 60
sRC, sREP, sNREP, sCH, sLAY = 64, 65, 66, 67, 68
sT0, sT1, sT2, sT3, sT4, sT5 = 70, 71, 72, 73, 74, 75
sC0, sC1 = 76, 77
sBUF, sDELTA = 78, 79
sOUT = 80
sSRC = 81
sK = 82
sNXT = 83
vTID, vLANE, vL16 = 0, 1, 2
vA0, vA1 = 3, 4
vT0, vT1, vT2, vT3 = 5, 6, 7, 8
vTR = 9
vDM = 10
FR = 16
ACC = 64
TMP = 128

ABUF = 66560


def srd(A, d, lo, nbytes):
    A(f's_mov_b32 s{d}, s{lo}')
    A(f's_mov_b32 s{d+1}, s{lo+1}')
    A(f's_mov_b32 s{d+2}, {nbytes}')
    A(f's_mov_b32 s{d+3}, 0x00020000')


def prologue(A):
    A('s_load_dwordx16 s[64:79], s[0:1], 0')
    A('s_load_dwordx8 s[80:87], s[0:1], 64')
    A('s_load_dwordx4 s[88:91], s[0:1], 96')
    A(f'v_and_b32 v{vLANE}, 63, v0')
    A(f'v_lshrrev_b32 v{vT0}, 6, v0')
    A(f'v_lshlrev_b32 v{vL16}, 4, v{vLANE}')
    A(f'v_readfirstlane_b32 s{sW}, v{vT0}')
    A('s_waitcnt lgkmcnt(0)')
    srd(A, SRD_X, 64, L.S * L.D * 2)
    srd(A, SRD_M0, 66, L.M * L.D * 2)
    srd(A, SRD_WQ, 68, L.D * 4096 * 2)
    srd(A, SRD_WK, 70, L.D * 4096 * 2)
    srd(A, SRD_WV, 72, L.D * 4096 * 2)
    srd(A, SRD_WO, 74, L.D * 4096 * 2)
    srd(A, SRD_WG, 80, L.D * L.F * 2)
    srd(A, SRD_WU, 82, L.D * L.F * 2)
    srd(A, SRD_WD, 84, L.D * L.F * 2)
    srd(A, SRD_OUT, 86, L.S * L.D * 2)
    srd(A, SRD_DBG, 88, 256)
    srd(A, SRD_WS, 90, 256 * L.MB)


def copy_srd(A, d, src, nbytes):
    A(f's_mov_b32 s{d}, s{src}')
    A(f's_mov_b32 s{d+1}, s{src+1}')
    A(f's_mov_b32 s{d+2}, {nbytes}')
    A(f's_mov_b32 s{d+3}, 0x00020000')


def load_weights(A, KS, pitch, korder, colperm, zero_ks0_flag=None):
    A(f'v_lshrrev_b32 v{vT0}, 2, v{vLANE}')
    A(f's_mov_b32 s{sT0}, {pitch}')
    A(f'v_mul_lo_u32 v{vT0}, v{vT0}, s{sT0}')
    A(f'v_and_b32 v{vT1}, 3, v{vLANE}')
    A(f'v_lshl_add_u32 v{vDM}, v{vT1}, 4, v{vT0}')
    A(f'v_lshrrev_b32 v{vT0}, 5, v{vLANE}')
    A(f'v_lshlrev_b32 v{vT0}, {9 if korder == "nat" else 8}, v{vT0}')
    A(f'v_bfe_u32 v{vT2}, v{vLANE}, 2, 2')
    A(f'v_lshl_add_u32 v{vT0}, v{vT2}, 6, v{vT0}')
    A(f'v_bfe_u32 v{vT2}, v{vLANE}, 4, 1')
    A(f'v_lshl_add_u32 v{vT0}, v{vT2}, 5, v{vT0}')
    if colperm:
        A(f'v_and_b32 v{vT2}, 1, v{vLANE}')
        A(f'v_lshl_add_u32 v{vT0}, v{vT2}, 4, v{vT0}')
        A(f'v_bfe_u32 v{vT2}, v{vLANE}, 1, 1')
        A(f'v_lshl_add_u32 v{vT0}, v{vT2}, 3, v{vT0}')
    else:
        A(f'v_lshl_add_u32 v{vT0}, v{vT1}, 3, v{vT0}')
    A(f's_lshl_b32 s{sT1}, s{sW}, 15')
    A(f'v_add_u32 v{vTR}, s{sT1}, v{vT0}')
    second = 256 if korder == 'nat' else 512
    npiece = (KS + 7) // 8

    def nks(p):
        return min(8, KS - 8 * p)

    def dma(p):
        for i in range(nks(p)):
            for nt in range(2):
                A(f's_add_u32 m0, s{sT1}, {(p % 2) * 16384 + nt * 8192 + i * 1024}')
                sc = sC0 if nt == 0 else sC1
                A('s_nop 0')
                A(f'buffer_load_dwordx4 v{vDM}, s[{SRD_WA + 4*nt}:{SRD_WA + 4*nt + 3}], s{sc} offen lds')
                A(f's_add_u32 s{sc}, s{sc}, {16 * pitch}')
    dma(0)
    if npiece > 1:
        dma(1)
    for p in range(npiece):
        nxt = 2 * nks(p + 1) if p + 1 < npiece else 0
        A(f's_waitcnt vmcnt({nxt})')
        for i in range(nks(p)):
            ks = 8 * p + i
            for nt in range(2):
                off = (p % 2) * 16384 + nt * 8192 + i * 1024
                r = (ks * 2 + nt) * 4
                A(f'ds_read_b64_tr_b16 {a(r,2)}, v{vTR} offset:{off}')
                A(f'ds_read_b64_tr_b16 {a(r+2,2)}, v{vTR} offset:{off + second}')
        A('s_waitcnt lgkmcnt(0)')
        if p + 2 < npiece:
            dma(p + 2)
    if zero_ks0_flag is not None:
        lab = A.uid('nz')
        A(f's_cmp_eq_u32 s{zero_ks0_flag}, 0')
        A(f's_cbranch_scc1 {lab}')
        for r in range(8):
            A(f'v_accvgpr_write_b32 a{r}, 0')
        A.label(lab)
    A('s_barrier')


def dma_rowmajor(A):
    A(f's_mul_i32 s{sT0}, s{sW}, {16*1040}')
    A(f's_add_u32 s{sT0}, s{sT0}, s{sBUF}')
    A(f's_lshl_b32 s{sT1}, s{sW}, 14')
    A(f's_add_u32 s{sT1}, s{sT1}, s{sSRC}')
    for r in range(16):
        A(f's_add_u32 m0, s{sT0}, {r*1040}')
        if r:
            A(f's_add_u32 s{sT1}, s{sT1}, 1024')
        else:
            A('s_nop 0')
        A(f'buffer_load_dwordx4 v{vL16}, s[{SRD_WS}:{SRD_WS+3}], s{sT1} offen sc1 lds')
    return 16


def dma_blocks(A, nblk, seg_stride, lds_mt_stride, second_half_start):
    A(f's_lshr_b32 s{sT2}, s{sW}, 1')
    A(f's_and_b32 s{sT3}, s{sW}, 1')
    A(f's_mul_i32 s{sT3}, s{sT3}, {second_half_start*1024}')
    A(f's_mul_i32 s{sT0}, s{sT2}, {lds_mt_stride}')
    A(f's_add_u32 s{sT0}, s{sT0}, s{sT3}')
    A(f's_add_u32 s{sT0}, s{sT0}, s{sBUF}')
    A(f's_mul_i32 s{sT1}, s{sT2}, {seg_stride}')
    A(f's_add_u32 s{sT1}, s{sT1}, s{sT3}')
    A(f's_add_u32 s{sT1}, s{sT1}, s{sSRC}')
    for b in range(nblk):
        if b % 4 == 0:
            A(f's_add_u32 m0, s{sT0}, {b*1024}')
            if b:
                A(f's_add_u32 s{sT1}, s{sT1}, 4096')
            else:
                A('s_nop 0')
        A(f'buffer_load_dwordx4 v{vL16}, s[{SRD_WS}:{SRD_WS+3}], s{sT1} offen offset:{(b%4)*1024} sc1 lds')
    return nblk


def kloop(A, KS, off, w_is_A, hook=None):
    PDIST = 3

    def rd(ks):
        for mt in range(2):
            A(f'ds_read_b128 {v(FR + ((ks % 4) * 2 + mt) * 4, 4)}, v{vA0 + mt} offset:{off(ks)}')
    for ks in range(min(PDIST, KS)):
        rd(ks)
    for ks in range(KS):
        if ks + PDIST < KS:
            rd(ks + PDIST)
        A(f's_waitcnt lgkmcnt({2 * min(PDIST, KS - 1 - ks)})')
        for nt in range(2):
            for mt in range(2):
                acc = v(ACC + (nt * 2 + mt) * 16, 16)
                wf = a((ks * 2 + nt) * 4, 4)
                xf = v(FR + ((ks % 4) * 2 + mt) * 4, 4)
                c = '0' if ks == 0 else acc
                if w_is_A:
                    A(f'v_mfma_f32_32x32x16_bf16 {acc}, {wf}, {xf}, {c}')
                else:
                    A(f'v_mfma_f32_32x32x16_bf16 {acc}, {xf}, {wf}, {c}')
        if hook:
            hook(ks)


def pack8(A, dst, src):
    for i in range(4):
        A(f'v_cvt_pk_bf16_f32 v{dst+i}, v{src+2*i}, v{src+2*i+1}')


def store_bf16_blocks(A, mt_stride):
    A.nop(12)
    A(f's_add_u32 s{sT0}, s{sOUT}, {mt_stride}')
    k = 0
    for mt in range(2):
        for nt in range(2):
            for b in range(2):
                t = TMP + 4 * k
                pack8(A, t, ACC + (nt * 2 + mt) * 16 + 8 * b)
                A(f'buffer_store_dwordx4 {v(t,4)}, v{vL16}, s[{SRD_WS}:{SRD_WS+3}], s{sOUT if mt == 0 else sT0} offen offset:{(2*nt+b)*1024} sc1')
                k += 1
    return 8


def frag_addr_rowmajor(A, swap_by=None):
    A(f'v_and_b32 v{vT0}, 31, v{vLANE}')
    A(f's_movk_i32 s{sT0}, 1040')
    A(f'v_mul_lo_u32 v{vT0}, v{vT0}, s{sT0}')
    A(f'v_lshrrev_b32 v{vT1}, 5, v{vLANE}')
    A(f'v_lshl_add_u32 v{vT0}, v{vT1}, 4, v{vT0}')
    if swap_by is None:
        A(f'v_mov_b32 v{vA0}, v{vT0}')
        A(f'v_add_u32 v{vA1}, {32*1040}, v{vT0}')
    else:
        A(f's_mul_i32 s{sT0}, s{swap_by}, {32*1040}')
        A(f's_sub_u32 s{sT1}, {32*1040}, s{sT0}')
        A(f'v_add_u32 v{vA0}, s{sT0}, v{vT0}')
        A(f'v_add_u32 v{vA1}, s{sT1}, v{vT0}')


def frag_addr_blocks(A, mt_stride):
    A(f'v_mov_b32 v{vA0}, v{vL16}')
    A(f'v_add_u32 v{vA1}, {mt_stride}, v{vL16}')


def toggle_buffers(A):
    A(f'v_add_u32 v{vA0}, s{sDELTA}, v{vA0}')
    A(f'v_add_u32 v{vA1}, s{sDELTA}, v{vA1}')
    A(f's_sub_u32 s{sBUF}, s{sBUF}, s{sDELTA}')
    A(f's_sub_u32 s{sDELTA}, 0, s{sDELTA}')


def task_loop(A, name, src_calc, dma, body):
    A(f's_mov_b32 s{sBUF}, 0')
    A(f's_mov_b32 s{sDELTA}, {ABUF}')
    A(f's_mov_b32 s{sCH}, s{sREP}')
    src_calc(sCH)
    dma()
    A(f's_mov_b32 s{sBUF}, {ABUF}')
    A.label(f'{name}_loop')
    A('s_waitcnt vmcnt(0)')
    A('s_barrier')
    A(f's_add_u32 s{sNXT}, s{sCH}, s{sNREP}')
    A(f's_cmp_ge_u32 s{sNXT}, {L.NCH}')
    A(f's_cbranch_scc1 {name}_nopf')
    src_calc(sNXT)
    dma()
    A.label(f'{name}_nopf')
    body()
    toggle_buffers(A)
    A(f's_mov_b32 s{sCH}, s{sNXT}')
    A(f's_cmp_lt_u32 s{sCH}, {L.NCH}')
    A(f's_cbranch_scc1 {name}_loop')
    A('s_endpgm')


def sel_layer(A, dst, arr):
    A(f's_mul_i32 s{dst}, s{sLAY}, {arr[1]-arr[0]}')
    A(f's_add_u32 s{dst}, s{dst}, {arr[0]}')


def role_kv(A):
    A.label('role_kv')
    A(f's_cmp_lt_u32 s{sW}, 2')
    A(f's_cselect_b32 s{SRD_WA}, s{SRD_WK}, s{SRD_WV}')
    A(f's_cselect_b32 s{SRD_WA+1}, s{SRD_WK+1}, s{SRD_WV+1}')
    A(f's_mov_b32 s{SRD_WA+2}, {L.D*4096*2}')
    A(f's_mov_b32 s{SRD_WA+3}, 0x00020000')
    copy_srd(A, SRD_WB, SRD_WA, L.D * 4096 * 2)
    A(f's_and_b32 s{sT0}, s{sW}, 1')
    A(f's_lshl_b32 s{sT0}, s{sT0}, 7')
    A(f's_lshl_b32 s{sC0}, s{sRC}, 8')
    A(f's_add_u32 s{sC0}, s{sC0}, s{sT0}')
    A(f's_add_u32 s{sC1}, s{sC0}, 64')
    load_weights(A, 32, 8192, 'nat', False)
    frag_addr_rowmajor(A)

    def src(sc):
        sel_layer(A, sSRC, L.XN)
        A(f's_lshl_b32 s{sT0}, s{sc}, 16')
        A(f's_add_u32 s{sSRC}, s{sSRC}, s{sT0}')

    def body():
        sel_layer(A, sT0, L.KB)
        sel_layer(A, sT1, L.VT)
        A(f's_cmp_lt_u32 s{sW}, 2')
        A(f's_cselect_b32 s{sOUT}, s{sT0}, s{sT1}')
        A(f's_lshl_b32 s{sT0}, s{sCH}, 19')
        A(f's_add_u32 s{sOUT}, s{sOUT}, s{sT0}')
        A(f's_lshl_b32 s{sT0}, s{sRC}, 13')
        A(f's_add_u32 s{sOUT}, s{sOUT}, s{sT0}')
        A(f's_and_b32 s{sT0}, s{sW}, 1')
        A(f's_lshl_b32 s{sT0}, s{sT0}, 12')
        A(f's_add_u32 s{sOUT}, s{sOUT}, s{sT0}')
        A(f's_cmp_lt_u32 s{sW}, 2')
        A('s_cbranch_scc0 kv_vpath')
        kloop(A, 32, lambda ks: ks * 32, True)
        A('s_branch kv_epi')
        A.label('kv_vpath')
        kloop(A, 32, lambda ks: ks * 32, False)
        A.label('kv_epi')
        store_bf16_blocks(A, 32 * 8192)
    task_loop(A, 'kv', src, lambda: dma_rowmajor(A), body)


def role_wo(A):
    A.label('role_wo')
    copy_srd(A, SRD_WA, SRD_WO, L.D * 4096 * 2)
    copy_srd(A, SRD_WB, SRD_WO, L.D * 4096 * 2)
    A(f's_lshr_b32 s{sK}, s{sRC}, 1')
    A(f's_and_b32 s{sT0}, s{sRC}, 1')
    A(f's_lshl_b32 s{sC0}, s{sK}, 19')
    A(f's_lshl_b32 s{sT0}, s{sT0}, 9')
    A(f's_add_u32 s{sC0}, s{sC0}, s{sT0}')
    A(f's_lshl_b32 s{sT0}, s{sW}, 7')
    A(f's_add_u32 s{sC0}, s{sC0}, s{sT0}')
    A(f's_add_u32 s{sC1}, s{sC0}, 64')
    load_weights(A, 32, 1024, 'D', True)
    frag_addr_blocks(A, 32768)

    def src(sc):
        sel_layer(A, sSRC, L.OB)
        A(f's_lshl_b32 s{sT0}, s{sc}, 19')
        A(f's_add_u32 s{sSRC}, s{sSRC}, s{sT0}')
        A(f's_lshl_b32 s{sT0}, s{sK}, 15')
        A(f's_add_u32 s{sSRC}, s{sSRC}, s{sT0}')

    def body():
        sel_layer(A, sOUT, L.PW)
        A(f's_lshl_b32 s{sT0}, s{sCH}, 19')
        A(f's_add_u32 s{sOUT}, s{sOUT}, s{sT0}')
        A(f's_lshl_b32 s{sT0}, s{sRC}, 14')
        A(f's_add_u32 s{sOUT}, s{sOUT}, s{sT0}')
        A(f's_lshl_b32 s{sT0}, s{sW}, 12')
        A(f's_add_u32 s{sOUT}, s{sOUT}, s{sT0}')
        kloop(A, 32, lambda ks: ks * 1024, True)
        store_bf16_blocks(A, 8 * 32768)
    task_loop(A, 'wo', src, lambda: dma_blocks(A, 16, 262144, 32768, 16), body)


def role_up(A):
    A.label('role_up')
    copy_srd(A, SRD_WA, SRD_WG, L.D * L.F * 2)
    copy_srd(A, SRD_WB, SRD_WU, L.D * L.F * 2)
    A(f's_lshl_b32 s{sK}, s{sRC}, 2')
    A(f's_add_u32 s{sK}, s{sK}, s{sW}')
    A(f's_lshl_b32 s{sC0}, s{sK}, 6')
    A(f's_mov_b32 s{sC1}, s{sC0}')
    load_weights(A, 32, L.F * 2, 'nat', False)
    frag_addr_rowmajor(A)

    def src(sc):
        sel_layer(A, sSRC, L.XF)
        A(f's_lshl_b32 s{sT0}, s{sc}, 16')
        A(f's_add_u32 s{sSRC}, s{sSRC}, s{sT0}')

    def body():
        sel_layer(A, sOUT, L.HB)
        A(f's_mul_i32 s{sT0}, s{sCH}, {2*L.HKS*1024}')
        A(f's_add_u32 s{sOUT}, s{sOUT}, s{sT0}')
        A(f's_lshl_b32 s{sT0}, s{sK}, 11')
        A(f's_add_u32 s{sOUT}, s{sOUT}, s{sT0}')
        A(f's_cmp_ge_u32 s{sK}, 43')
        A('s_cbranch_scc1 up_skip')
        kloop(A, 32, lambda ks: ks * 32, True)
        A.nop(12)
        A(f's_add_u32 s{sT0}, s{sOUT}, {L.HKS*1024}')
        A(f's_mov_b32 s{sT1}, 0xbfb8aa3b')
        for mt in range(2):
            g = ACC + mt * 16
            u = ACC + (2 + mt) * 16
            t = TMP + 32 + mt * 16
            for r in range(16):
                A(f'v_mul_f32 v{t+r}, s{sT1}, v{g+r}')
            for r in range(16):
                A(f'v_exp_f32 v{t+r}, v{t+r}')
            for r in range(16):
                A(f'v_add_f32 v{t+r}, 1.0, v{t+r}')
            for r in range(16):
                A(f'v_rcp_f32 v{t+r}, v{t+r}')
            for r in range(16):
                A(f'v_mul_f32 v{g+r}, v{g+r}, v{u+r}')
            for r in range(16):
                A(f'v_mul_f32 v{g+r}, v{g+r}, v{t+r}')
            for b in range(2):
                tt = TMP + (mt * 2 + b) * 4
                pack8(A, tt, g + 8 * b)
                A(f'buffer_store_dwordx4 {v(tt,4)}, v{vL16}, s[{SRD_WS}:{SRD_WS+3}], s{sOUT if mt == 0 else sT0} offen offset:{b*1024} sc1')
        A.label('up_skip')
    task_loop(A, 'up', src, lambda: dma_rowmajor(A), body)


DK0 = [0, 29, 57]
def role_down(A):
    A.label('role_down')
    copy_srd(A, SRD_WA, SRD_WD, L.D * L.F * 2)
    copy_srd(A, SRD_WB, SRD_WD, L.D * L.F * 2)
    A(f's_lshr_b32 s{sT4}, s{sRC}, 1')
    A(f's_mul_i32 s{sK}, s{sT4}, 29')
    A(f's_lshr_b32 s{sT5}, s{sT4}, 1')
    A(f's_sub_u32 s{sK}, s{sK}, s{sT5}')
    A(f's_lshl_b32 s{sC0}, s{sK}, 14')
    A(f's_and_b32 s{sT0}, s{sRC}, 1')
    A(f's_lshl_b32 s{sT0}, s{sT0}, 9')
    A(f's_add_u32 s{sC0}, s{sC0}, s{sT0}')
    A(f's_lshl_b32 s{sT0}, s{sW}, 7')
    A(f's_add_u32 s{sC0}, s{sC0}, s{sT0}')
    A(f's_add_u32 s{sC1}, s{sC0}, 64')
    load_weights(A, 29, 1024, 'D', False, zero_ks0_flag=sT5)
    frag_addr_blocks(A, 29 * 1024)

    def src(sc):
        sel_layer(A, sSRC, L.HB)
        A(f's_mul_i32 s{sT0}, s{sc}, {2*L.HKS*1024}')
        A(f's_add_u32 s{sSRC}, s{sSRC}, s{sT0}')
        A(f's_lshl_b32 s{sT0}, s{sK}, 10')
        A(f's_add_u32 s{sSRC}, s{sSRC}, s{sT0}')

    def body():
        sel_layer(A, sOUT, L.PD)
        A(f's_mul_i32 s{sT0}, s{sCH}, {2*3*65536}')
        A(f's_add_u32 s{sOUT}, s{sOUT}, s{sT0}')
        A(f's_lshl_b32 s{sT0}, s{sRC}, 15')
        A(f's_add_u32 s{sOUT}, s{sOUT}, s{sT0}')
        A(f's_lshl_b32 s{sT0}, s{sW}, 13')
        A(f's_add_u32 s{sOUT}, s{sOUT}, s{sT0}')
        kloop(A, 29, lambda ks: ks * 1024, True)
        A.nop(12)
        for mt in range(2):
            for nt in range(2):
                A(f's_add_u32 s{sT0}, s{sOUT}, {mt*3*65536 + nt*4096}')
                for q in range(4):
                    A(f'buffer_store_dwordx4 {v(ACC + (nt*2+mt)*16 + 4*q, 4)}, v{vL16}, s[{SRD_WS}:{SRD_WS+3}], s{sT0} offen offset:{q*1024} sc1')
        A.nop(2)
    task_loop(A, 'down', src, lambda: dma_blocks(A, 15, L.HKS * 1024, 29 * 1024, 14), body)
```

```python
S, D, H, DH, M, SEG, F = 2048, 512, 32, 128, 8, 32, 1376
NSEG = S // SEG
CH = 64
NCH = S // CH
MB = 1 << 20

_off = 0
def alloc(n, align=4096):
    global _off
    _off = (_off + align - 1) // align * align
    o = _off
    _off += n
    return o

ZERO_BASE = alloc(0)
FLAGS = alloc(64 * 1024)
HOP_P = [alloc(2 * 32 * 8192) for _ in range(2)]
HOP_M = [alloc(2 * 8192) for _ in range(2)]
ZERO_END = alloc(0)
ZERO_BYTES = ZERO_END - ZERO_BASE

XN = [alloc(S * D * 2) for _ in range(2)]
KB = [alloc(NSEG * H * 8192) for _ in range(2)]
VT = [alloc(NSEG * H * 8192) for _ in range(2)]
KM = [alloc(NSEG * H * 2048) for _ in range(2)]
VM = [alloc(NSEG * H * 2048) for _ in range(2)]
OB = [alloc(S * H * DH * 2) for _ in range(2)]
PWN = 8
PW = [alloc(PWN * S * D * 2) for _ in range(2)]
X1 = [alloc(S * D * 2) for _ in range(2)]
XF = [alloc(S * D * 2) for _ in range(2)]
HKS = 86
HB = [alloc(NSEG * HKS * 1024) for _ in range(2)]
PDN = 3
PD = [alloc(PDN * S * D * 4) for _ in range(2)]
X2 = alloc(S * D * 2)
DBGA = alloc(1 * MB)
WS_END = alloc(0)
assert WS_END <= 256 * MB, WS_END
DOWN_KS = [29, 29, 28]
DOWN_K0 = [0, 29, 58]
```

```python
from asmlib import *
import layout as L
from bulk import *

QF = 128
KF = 160
KMF = 192
VF = 224
VMF = 48
BIAS = 16
XCH = 2 * ABUF
sHD, sWH = 84, 85
sKB, sKO, sKMB, sKMO, sVB, sVMB = 86, 87, 88, 89, 90, 91
sSC = 92
vKM, vVM, vXW, vXR, vN = 11, 12, 13, 14, 15


def role_qa(A):
    A.label('role_qa')
    copy_srd(A, SRD_WA, SRD_WQ, L.D * 4096 * 2)
    copy_srd(A, SRD_WB, SRD_WQ, L.D * 4096 * 2)
    A(f's_lshr_b32 s{sT0}, s{sW}, 1')
    A(f's_lshl_b32 s{sHD}, s{sRC}, 1')
    A(f's_add_u32 s{sHD}, s{sHD}, s{sT0}')
    A(f's_and_b32 s{sWH}, s{sW}, 1')
    A(f's_lshl_b32 s{sC0}, s{sRC}, 9')
    A(f's_lshl_b32 s{sT0}, s{sW}, 7')
    A(f's_add_u32 s{sC0}, s{sC0}, s{sT0}')
    A(f's_add_u32 s{sC1}, s{sC0}, 64')
    load_weights(A, 32, 8192, 'nat', False)
    frag_addr_rowmajor(A, swap_by=sWH)
    A(f'v_lshrrev_b32 v{vT0}, 5, v{vLANE}')
    A(f'v_and_b32 v{vT1}, 7, v{vLANE}')
    A(f'v_lshlrev_b32 v{vT1}, 4, v{vT1}')
    A(f'v_lshl_add_u32 v{vKM}, v{vT0}, 7, v{vT1}')
    A(f'v_and_b32 v{vT1}, 31, v{vLANE}')
    A(f'v_lshlrev_b32 v{vT2}, 4, v{vT1}')
    A(f'v_lshl_add_u32 v{vVM}, v{vT0}, 3, v{vT2}')
    A(f'v_lshlrev_b32 v{vT2}, 2, v{vT0}')
    A(f'v_sub_u32 v{vN}, v{vT1}, v{vT2}')
    A(f's_mul_i32 s{sT0}, s{sW}, 5120')
    A(f's_add_u32 s{sT0}, s{sT0}, {XCH}')
    A(f'v_add_u32 v{vXW}, s{sT0}, v{vL16}')
    A(f's_xor_b32 s{sT0}, s{sW}, 1')
    A(f's_mul_i32 s{sT0}, s{sT0}, 5120')
    A(f's_add_u32 s{sT0}, s{sT0}, {XCH}')
    A(f'v_add_u32 v{vXR}, s{sT0}, v{vL16}')
    for et in range(4):
        A(f'v_mov_b32 v{VMF+4*et+2}, 0')
        A(f'v_mov_b32 v{VMF+4*et+3}, 0')
    A(f's_mov_b32 s{sSC}, 0x3e0293ee')

    def src(sc):
        sel_layer(A, sSRC, L.XN)
        A(f's_lshl_b32 s{sT0}, s{sc}, 16')
        A(f's_add_u32 s{sSRC}, s{sSRC}, s{sT0}')

    def body():
        ws = f's[{SRD_WS}:{SRD_WS+3}]'
        A(f's_lshl_b32 s{sT0}, s{sCH}, 1')
        A(f's_add_u32 s{sT1}, s{sT0}, s{sWH}')
        A(f's_xor_b32 s{sT2}, s{sT1}, 1')
        A(f's_lshl_b32 s{sT1}, s{sT1}, 5')
        A(f's_add_u32 s{sT1}, s{sT1}, s{sHD}')
        A(f's_lshl_b32 s{sT2}, s{sT2}, 5')
        A(f's_add_u32 s{sT2}, s{sT2}, s{sHD}')
        A(f's_lshl_b32 s{sT3}, s{sWH}, 12')
        sel_layer(A, sT0, L.KB)
        A(f's_add_u32 s{sT0}, s{sT0}, s{sT3}')
        A(f's_lshl_b32 s{sKB}, s{sT1}, 13')
        A(f's_add_u32 s{sKB}, s{sKB}, s{sT0}')
        A(f's_lshl_b32 s{sKO}, s{sT2}, 13')
        A(f's_add_u32 s{sKO}, s{sKO}, s{sT0}')
        A(f's_lshl_b32 s{sT3}, s{sWH}, 10')
        sel_layer(A, sT0, L.KM)
        A(f's_add_u32 s{sT0}, s{sT0}, s{sT3}')
        A(f's_lshl_b32 s{sKMB}, s{sT1}, 11')
        A(f's_add_u32 s{sKMB}, s{sKMB}, s{sT0}')
        A(f's_lshl_b32 s{sKMO}, s{sT2}, 11')
        A(f's_add_u32 s{sKMO}, s{sKMO}, s{sT0}')
        sel_layer(A, sT0, L.VT)
        A(f's_lshl_b32 s{sVB}, s{sT1}, 13')
        A(f's_add_u32 s{sVB}, s{sVB}, s{sT0}')
        sel_layer(A, sT0, L.VM)
        A(f's_lshl_b32 s{sVMB}, s{sT1}, 11')
        A(f's_add_u32 s{sVMB}, s{sVMB}, s{sT0}')
        sel_layer(A, sT0, L.OB)
        A(f's_lshl_b32 s{sOUT}, s{sT1}, 13')
        A(f's_add_u32 s{sOUT}, s{sOUT}, s{sT0}')
        for mt in range(2):
            for sl in range(4):
                A(f'buffer_load_dwordx4 {v(KF+(mt*4+sl)*4,4)}, v{vL16}, {ws}, s{sKB if mt == 0 else sKO} offen offset:{sl*1024} sc1')
        for mt in range(2):
            for sl in range(4):
                A(f'buffer_load_dwordx4 {v(KMF+(mt*4+sl)*4,4)}, v{vKM}, {ws}, s{sKMB if mt == 0 else sKMO} offen offset:{sl*256} sc1')
        A(f's_add_u32 s{sT0}, s{sVB}, 4096')
        for b in range(8):
            A(f'buffer_load_dwordx4 {v(VF+b*4,4)}, v{vL16}, {ws}, s{sVB if b < 4 else sT0} offen offset:{(b%4)*1024} sc1')
        for et in range(4):
            A(f'buffer_load_dwordx2 {v(VMF+4*et,2)}, v{vVM}, {ws}, s{sVMB} offen offset:{et*512} sc1')
        kloop(A, 32, lambda ks: ks * 32, True)
        A.nop(12)
        for mt in range(2):
            for nt in range(2):
                for b in range(2):
                    pack8(A, QF + (mt * 4 + 2 * nt + b) * 4, ACC + (nt * 2 + mt) * 16 + 8 * b)
        A('s_waitcnt vmcnt(12)')
        for mt in (1, 0):
            for tile in range(2):
                acc = v(ACC + (mt * 2 + tile) * 16, 16)
                for sl in range(4):
                    kf = v((KF if tile == 0 else KMF) + (mt * 4 + sl) * 4, 4)
                    A(f'v_mfma_f32_32x32x16_bf16 {acc}, {kf}, {v(QF+(mt*4+sl)*4,4)}, {"0" if sl == 0 else acc}')
        A.nop(4)
        for i in range(4):
            A(f'ds_write_b128 v{vXW}, {v(ACC+32+4*i,4)} offset:{i*1024}')
        A(f'ds_write_b128 v{vXW}, {v(ACC+48,4)} offset:4096')
        A('s_waitcnt lgkmcnt(0)')
        A('s_barrier')
        R = ACC + 32
        for i in range(5):
            A(f'ds_read_b128 {v(R+4*i,4)}, v{vXR} offset:{i*1024}')
        A('s_waitcnt lgkmcnt(0)')
        for r in range(20):
            A(f'v_add_f32 v{ACC+r}, v{ACC+r}, v{R+r}')
        for r in range(20):
            A(f'v_mul_f32 v{ACC+r}, s{sSC}, v{ACC+r}')
        A(f'v_mov_b32 v{vT3}, 0xff7fffff')
        for r in range(16):
            key = 8 * (r // 4) + (r % 4)
            sp = 94 + 2 * (r % 4)
            A(f'v_cmp_le_i32 s[{sp}:{sp+1}], {key}, v{vN}')
            if r % 4 == 3:
                A.nop(2)
                for rr in range(r - 3, r + 1):
                    sp2 = 94 + 2 * (rr % 4)
                    A(f'v_cndmask_b32 v{ACC+rr}, v{vT3}, v{ACC+rr}, s[{sp2}:{sp2+1}]')
        A(f'v_max3_f32 v{vT0}, v{ACC}, v{ACC+1}, v{ACC+2}')
        for r in range(3, 19, 2):
            A(f'v_max3_f32 v{vT0}, v{vT0}, v{ACC+r}, v{ACC+r+1}')
        A(f'v_max_f32 v{vT0}, v{vT0}, v{ACC+19}')
        A(f'v_mov_b32 v{vT1}, v{vT0}')
        A.nop(2)
        A(f'v_permlane32_swap_b32 v{vT0}, v{vT1}')
        A.nop(1)
        A(f'v_max_f32 v{vT0}, v{vT0}, v{vT1}')
        for r in range(20):
            A(f'v_sub_f32 v{ACC+r}, v{ACC+r}, v{vT0}')
        for r in range(20):
            A(f'v_exp_f32 v{ACC+r}, v{ACC+r}')
        A.nop(1)
        A(f'v_add_f32 v{vT0}, v{ACC}, v{ACC+1}')
        A(f'v_add_f32 v{vT1}, v{ACC+2}, v{ACC+3}')
        for r in range(4, 20, 2):
            A(f'v_add_f32 v{vT0}, v{vT0}, v{ACC+r}')
            A(f'v_add_f32 v{vT1}, v{vT1}, v{ACC+r+1}')
        A(f'v_add_f32 v{vT0}, v{vT0}, v{vT1}')
        A(f'v_mov_b32 v{vT1}, v{vT0}')
        A.nop(2)
        A(f'v_permlane32_swap_b32 v{vT0}, v{vT1}')
        A.nop(1)
        A(f'v_add_f32 v{vT0}, v{vT0}, v{vT1}')
        A(f'v_rcp_f32 v{vT0}, v{vT0}')
        A.nop(1)
        for r in range(20):
            A(f'v_mul_f32 v{ACC+r}, v{ACC+r}, v{vT0}')
        PF = QF
        pack8(A, PF, ACC)
        pack8(A, PF + 4, ACC + 8)
        A(f'v_cvt_pk_bf16_f32 v{PF+8}, v{ACC+16}, v{ACC+17}')
        A(f'v_cvt_pk_bf16_f32 v{PF+9}, v{ACC+18}, v{ACC+19}')
        A(f'v_mov_b32 v{PF+10}, 0')
        A(f'v_mov_b32 v{PF+11}, 0')
        A('s_waitcnt vmcnt(0)')
        A.nop(2)
        for st in range(3):
            for et in range(4):
                acc = v(ACC + et * 16, 16)
                af = v(VF + (et * 2 + st) * 4, 4) if st < 2 else v(VMF + 4 * et, 4)
                A(f'v_mfma_f32_32x32x16_bf16 {acc}, {af}, {v(PF+4*st,4)}, {"0" if st == 0 else acc}')
        A.nop(12)
        A(f's_add_u32 s{sT0}, s{sOUT}, 4096')
        for et in range(4):
            for b in range(2):
                blk = 2 * et + b
                t = KF + blk * 4
                pack8(A, t, ACC + et * 16 + 8 * b)
                A(f'buffer_store_dwordx4 {v(t,4)}, v{vL16}, {ws}, s{sOUT if blk < 4 else sT0} offen offset:{(blk%4)*1024} sc1')
    task_loop(A, 'qa', src, lambda: dma_rowmajor(A), body)
```

```python
from asmlib import *
import layout as L
from bulk import *

MEMIMG, SX1, SX2, OIMG, QKS, WOL = 0, 8192, 16384, 24576, 26624, 32768
RS = 80
rL16 = 2
rIDX = 3
rX = 4
rQW, rQR, rKR, rOW, rWO = 8, 9, 10, 11, 12
rKS, rVS, rPR, rMS, rKMS, rVMS, rTAG = 13, 14, 15, 16, 17, 18, 19
rT0, rT1, rT2, rT3 = 20, 21, 22, 23
rSEL = 24
rT4, rT5, rT6, rT7 = 28, 29, 30, 31
VA = 32
AC = 64
KF = 88
VFr = 96
WK_ = 104
WV = 128
sH, sMODE, sSTEP = 64, 65, 66
sPW, sPR, sMW, sMR = 84, 85, 86, 87
sKV, sKMo = 88, 89
sVd, sVMd = 90, 91
sSCL, sSPIN, sMASK = 92, 93, 94
sSLOTP, sSLOTM = 95, 96
sE0 = 98


def wq(t, k): return a((t * 8 + k) * 8, 8)
def wk(t, k): return a(128 + (t * 8 + k) * 8, 8)
def wv(u, k): return v(WV + (u * 8 + k) * 8, 8)


def smf(A, acc, af, bf):
    A(f'v_smfmac_f32_16x16x64_bf16 {v(acc,4)}, {v(af,4)}, {bf}, v{rIDX}')


def hop_store(A, ins):
    l1, l2 = A.uid('hs'), A.uid('hs')
    A(f's_cmp_eq_u32 s{sMODE}, 0')
    A(f's_cbranch_scc0 {l1}')
    for i in ins:
        A(i)
    A(f's_branch {l2}')
    A.label(l1)
    for i in ins:
        A(i + ' sc1')
    A.label(l2)


def rec_setup(A):
    ws = f's[{SRD_WS}:{SRD_WS+3}]'
    ln = vLANE
    A(f'v_and_b32 v{rT0}, 1, v{ln}')
    A(f'v_mov_b32 v{rT1}, 0x4444')
    A(f'v_mov_b32 v{rT2}, 0xeeee')
    A(f'v_cmp_eq_u32 vcc, 1, v{rT0}')
    A.nop(2)
    A(f'v_cndmask_b32 v{rIDX}, v{rT1}, v{rT2}, vcc')
    for j in range(4):
        A(f's_xor_b32 s{sT0}, s{sW}, {j}')
        A(f's_lshl_b32 s{sT0}, s{sT0}, 11')
        A(f'v_add_u32 v{rX+j}, s{sT0}, v{rL16}')
    A(f'v_lshrrev_b32 v{rT0}, 4, v{ln}')
    A(f'v_and_b32 v{rT1}, 15, v{ln}')
    A(f's_mul_i32 s{sT0}, s{sW}, 1280')
    A(f's_add_u32 s{sT0}, s{sT0}, {QKS}')
    A(f'v_mul_u32_u24 v{rT2}, {2*RS}, v{rT0}')
    A(f'v_lshl_add_u32 v{rT2}, v{rT1}, 1, v{rT2}')
    A(f'v_add_u32 v{rQW}, s{sT0}, v{rT2}')
    A(f'v_and_b32 v{rT2}, 7, v{rT1}')
    A(f'v_mul_u32_u24 v{rT2}, {RS}, v{rT2}')
    A(f'v_lshl_add_u32 v{rT2}, v{rT0}, 4, v{rT2}')
    A(f'v_add_u32 v{rQR}, s{sT0}, v{rT2}')
    A(f'v_lshrrev_b32 v{rT2}, 2, v{rT1}')
    A(f'v_and_b32 v{rT3}, 1, v{rT1}')
    A(f'v_lshl_add_u32 v{rT2}, v{rT2}, 1, v{rT3}')
    A(f'v_mul_u32_u24 v{rT3}, {RS}, v{rT2}')
    A(f'v_lshl_add_u32 v{rT3}, v{rT0}, 4, v{rT3}')
    A(f'v_add_u32 v{rKR}, s{sT0}, v{rT3}')
    A(f'v_lshlrev_b32 v{rT3}, 4, v{rT2}')
    A(f'v_lshl_add_u32 v{rT3}, v{rT0}, 7, v{rT3}')
    A(f's_lshl_b32 s{sT0}, s{sW}, 9')
    A(f'v_add_u32 v{rKMS}, s{sT0}, v{rT3}')
    A(f'v_lshlrev_b32 v{rT3}, 2, v{rT0}')
    A(f'v_lshl_add_u32 v{rT3}, v{rT1}, 4, v{rT3}')
    A(f'v_add_u32 v{rVMS}, s{sT0}, v{rT3}')
    A(f'v_lshrrev_b32 v{rT2}, 1, v{rT0}')
    A(f'v_lshlrev_b32 v{rT2}, 8, v{rT2}')
    A(f'v_and_b32 v{rT3}, 7, v{rT1}')
    A(f'v_lshl_add_u32 v{rT2}, v{rT3}, 5, v{rT2}')
    A(f'v_and_b32 v{rT3}, 1, v{rT0}')
    A(f'v_lshl_add_u32 v{rT2}, v{rT3}, 4, v{rT2}')
    A(f's_add_u32 s{sT0}, s{sT0}, {OIMG}')
    A(f'v_add_u32 v{rOW}, s{sT0}, v{rT2}')
    A(f's_lshl_b32 s{sT0}, s{sW}, 15')
    A(f's_add_u32 s{sT0}, s{sT0}, {WOL}')
    A(f'v_add_u32 v{rWO}, s{sT0}, v{rL16}')
    A(f'v_lshlrev_b32 v{rT2}, 9, v{rT0}')
    A(f'v_lshrrev_b32 v{rT3}, 3, v{rT1}')
    A(f'v_lshl_add_u32 v{rT2}, v{rT3}, 8, v{rT2}')
    A(f'v_and_b32 v{rT3}, 7, v{rT1}')
    A(f'v_lshl_add_u32 v{rT2}, v{rT3}, 4, v{rT2}')
    A(f's_lshl_b32 s{sT0}, s{sW}, 11')
    A(f'v_add_u32 v{rKS}, s{sT0}, v{rT2}')
    A(f'v_lshlrev_b32 v{rT2}, 9, v{rT0}')
    A(f'v_lshl_add_u32 v{rT2}, v{rT1}, 4, v{rT2}')
    A(f'v_add_u32 v{rVS}, s{sT0}, v{rT2}')
    A(f'v_lshrrev_b32 v{rT2}, 2, v{ln}')
    A(f'v_lshlrev_b32 v{rT2}, 13, v{rT2}')
    A(f'v_and_b32 v{rT3}, 3, v{ln}')
    A(f'v_lshl_add_u32 v{rPR}, v{rT3}, 4, v{rT2}')
    A(f'v_lshlrev_b32 v{rT2}, 5, v{rT0}')
    A(f'v_lshl_add_u32 v{rMS}, v{rT3}, 3, v{rT2}')
    A(f'v_mov_b32 v{rT2}, 0x3f80')
    A(f'v_mov_b32 v{rT4}, 0x3f800000')
    A(f'v_cmp_gt_u32 vcc, 4, v{rT1}')
    A.nop(2)
    A(f'v_cndmask_b32 v{rT2}, v{rT4}, v{rT2}, vcc')
    A(f'v_cmp_gt_u32 vcc, 8, v{rT1}')
    A.nop(2)
    A(f'v_cndmask_b32 v{rT2}, 0, v{rT2}, vcc')
    for d in range(4):
        A(f'v_cmp_eq_u32 vcc, {d}, v{rT3}')
        A.nop(2)
        A(f'v_cndmask_b32 v{rSEL+d}, 0, v{rT2}, vcc')
    A(f's_mov_b32 s{sSCL}, 0x3e0293ee')
    A(f's_mov_b32 s{sMASK}, 0xfffffffe')


def rec_load_weights(A):
    ln = vLANE
    sB = sT1
    A(f's_lshl_b32 s{sB}, s{sW}, 15')
    A(f's_add_u32 s{sB}, s{sB}, {WOL}')
    A(f'v_lshrrev_b32 v{rT0}, 4, v{ln}')
    A(f'v_bfe_u32 v{rT1}, v{ln}, 2, 2')
    A(f'v_and_b32 v{rT2}, 3, v{ln}')
    A(f'v_lshrrev_b32 v{rT3}, 1, v{rT0}')
    A(f'v_lshlrev_b32 v{rT3}, 2, v{rT3}')
    A(f'v_and_b32 v{rT4}, 1, v{rT0}')
    A(f'v_add_u32 v{rT3}, v{rT3}, v{rT4}')
    A(f'v_and_b32 v{rT4}, 1, v{rT1}')
    A(f'v_lshl_add_u32 v{rT3}, v{rT4}, 4, v{rT3}')
    A(f'v_lshrrev_b32 v{rT4}, 1, v{rT1}')
    A(f'v_lshl_add_u32 v{rT3}, v{rT4}, 1, v{rT3}')
    A(f'v_lshlrev_b32 v{rT3}, 13, v{rT3}')
    vDQ, vDO, vTP, vTN = WK_, WK_ + 1, WK_ + 2, WK_ + 3
    A(f'v_lshl_add_u32 v{vDQ}, v{rT2}, 4, v{rT3}')
    A(f'v_and_b32 v{rT3}, 1, v{rT0}')
    A(f'v_lshlrev_b32 v{rT3}, 4, v{rT3}')
    A(f'v_lshrrev_b32 v{rT4}, 1, v{rT0}')
    A(f'v_lshl_add_u32 v{rT3}, v{rT4}, 3, v{rT3}')
    A(f'v_lshrrev_b32 v{rT4}, 1, v{rT1}')
    A(f'v_lshl_add_u32 v{rT3}, v{rT4}, 2, v{rT3}')
    A(f'v_and_b32 v{rT4}, 1, v{rT1}')
    A(f'v_add_u32 v{rT3}, v{rT3}, v{rT4}')
    A(f'v_lshlrev_b32 v{rT3}, 10, v{rT3}')
    A(f'v_lshl_add_u32 v{vDO}, v{rT2}, 4, v{rT3}')
    A(f'v_lshrrev_b32 v{rT3}, 2, v{ln}')
    A(f'v_lshlrev_b32 v{rT3}, 6, v{rT3}')
    A(f'v_add_u32 v{rT3}, s{sB}, v{rT3}')
    A(f'v_lshl_add_u32 v{vTN}, v{rT2}, 3, v{rT3}')
    A(f'v_and_b32 v{rT4}, 1, v{ln}')
    A(f'v_lshl_add_u32 v{rT3}, v{rT4}, 4, v{rT3}')
    A(f'v_bfe_u32 v{rT4}, v{ln}, 1, 1')
    A(f'v_lshl_add_u32 v{vTP}, v{rT4}, 3, v{rT3}')
    sQ, sO = sT2, sT3
    A(f's_lshl_b32 s{sQ}, s{sH}, 8')
    A(f's_lshl_b32 s{sT0}, s{sW}, 6')
    A(f's_add_u32 s{sQ}, s{sQ}, s{sT0}')
    A(f's_lshl_b32 s{sO}, s{sH}, 17')
    A(f's_lshl_b32 s{sT0}, s{sW}, 8')
    A(f's_add_u32 s{sO}, s{sO}, s{sT0}')

    halves = [(m, hf) for m in range(4) for hf in range(2)]

    def dma(i):
        m, hf = halves[i]
        for b in range(16):
            lds = hf * 16384 + b * 1024
            if m < 3:
                kap, cp = hf * 4 + b // 4, b % 4
                if cp == 0:
                    A(f's_xor_b32 s{sT4}, s{sW}, {kap // 2}')
                    A(f's_lshl_b32 s{sT4}, s{sT4}, 20')
                    A(f's_add_u32 s{sT4}, s{sT4}, s{sQ}')
                    A(f's_add_u32 s{sT4}, s{sT4}, {(kap % 2) * 64 * 8192}')
                A(f's_add_u32 s{sT5}, s{sT4}, {(32 * (cp % 2) + 8 * (cp // 2)) * 8192}')
                A(f's_add_u32 m0, s{sB}, {lds}')
                sr = [SRD_WQ, SRD_WK, SRD_WV][m]
                A('s_nop 0')
                A(f'buffer_load_dwordx4 v{vDQ}, s[{sr}:{sr+3}], s{sT5} offen lds')
            else:
                cp, qd = b // 4, b % 4
                A(f's_add_u32 s{sT5}, s{sO}, {(64 * hf + 32 * (cp // 2) + 2 * (cp % 2)) * 1024 + qd * 64}')
                A(f's_add_u32 m0, s{sB}, {lds}')
                A('s_nop 0')
                A(f'buffer_load_dwordx4 v{vDO}, s[{SRD_WO}:{SRD_WO+3}], s{sT5} offen lds')

    dma(0)
    dma(1)
    for i, (m, hf) in enumerate(halves):
        A(f's_waitcnt vmcnt({16 if i + 1 < len(halves) else 0})')
        for b in range(16):
            lds = hf * 16384 + b * 1024
            for t in range(2):
                if m < 3:
                    kap, cp = hf * 4 + b // 4, b % 4
                    base = (t * 8 + kap) * 8 + 2 * cp
                    if m == 0:
                        dst, ad = a(base, 2), vTP
                    elif m == 1:
                        dst, ad = a(128 + base, 2), vTP
                    else:
                        dst, ad = v(WV + base, 2), vTN
                else:
                    cp, qd = b // 4, b % 4
                    ct = 2 * qd + t
                    dst, ad = v(VA + ct * 8 + 2 * cp, 2), vTN
                A(f'ds_read_b64_tr_b16 {dst}, v{ad} offset:{lds + t * 32}')
        A('s_waitcnt lgkmcnt(0)')
        if m == 3:
            for ct in range(8):
                for hh in range(2):
                    A(f'ds_write_b128 v{rWO}, {v(VA + ct * 8 + 4 * hh, 4)} offset:{hf * 16384 + ct * 2048 + hh * 1024}')
            A('s_waitcnt lgkmcnt(0)')
        if i + 2 < len(halves):
            dma(i + 2)


def poll(A, regs, loads, name):
    lab, ok = A.uid('poll'), A.uid('pok')
    A(f's_mov_b32 s{sSPIN}, 0x200000')
    A.label(lab)
    for ld in loads:
        A(ld)
    A('s_waitcnt vmcnt(0)')
    A(f'v_xor_b32 v{rT0}, v{regs[0]}, v{rTAG}')
    for r in regs[1:]:
        A(f'v_bitop3_b32 v{rT0}, v{rT0}, v{r}, v{rTAG} bitop3:0xf6')
    A(f'v_and_b32 v{rT0}, 1, v{rT0}')
    A(f'v_cmp_ne_u32 vcc, 0, v{rT0}')
    A(f's_cbranch_vccz {ok}')
    A(f's_sub_u32 s{sSPIN}, s{sSPIN}, 1')
    A(f's_cmp_lg_u32 s{sSPIN}, 0')
    A(f's_cbranch_scc1 {lab}')
    A('s_endpgm')
    A.label(ok)


def zero(A, r, n):
    for i in range(0, n, 2):
        A(f'v_mov_b64 {v(r+i,2)}, 0')


def kv_prefetch(A, which):
    ws = f's[{SRD_WS}:{SRD_WS+3}]'
    if which == 'k':
        for T in range(2):
            A(f'buffer_load_dwordx4 {v(KF+4*T,4)}, v{rKS}, {ws}, s{sKV} offen offset:{T*128} sc1')
    else:
        A(f's_add_u32 s{sT0}, s{sKV}, s{sVd}')
        for u in range(2):
            A(f'buffer_load_dwordx4 {v(VFr+4*u,4)}, v{rVS}, {ws}, s{sT0} offen offset:{u*256} sc1')


def role_rec(A, wait_kv=None, signal=None):
    ws = f's[{SRD_WS}:{SRD_WS+3}]'
    A.label('role_rec')
    rec_setup(A)
    rec_load_weights(A)
    sel_layer(A, sKV, L.KB)
    A(f's_lshl_b32 s{sT0}, s{sH}, 13')
    A(f's_add_u32 s{sKV}, s{sKV}, s{sT0}')
    assert L.VT[0] - L.KB[0] == L.VT[1] - L.KB[1] and L.VM[0] - L.KM[0] == L.VM[1] - L.KM[1]
    A(f's_mov_b32 s{sVd}, {L.VT[0] - L.KB[0]}')
    A(f's_mov_b32 s{sVMd}, {L.VM[0] - L.KM[0]}')
    sel_layer(A, sKMo, L.KM)
    A(f's_lshl_b32 s{sT0}, s{sH}, 11')
    A(f's_add_u32 s{sKMo}, s{sKMo}, s{sT0}')
    sel_layer(A, sT1, L.HOP_P)
    A(f's_lshl_b32 s{sPW}, s{sH}, 13')
    A(f's_add_u32 s{sPW}, s{sPW}, s{sT1}')
    A(f's_lshl_b32 s{sT0}, s{sW}, 11')
    A(f's_add_u32 s{sPW}, s{sPW}, s{sT0}')
    A(f's_lshl_b32 s{sPR}, s{sH}, 8')
    A(f's_add_u32 s{sPR}, s{sPR}, s{sT1}')
    A(f's_lshl_b32 s{sT0}, s{sW}, 6')
    A(f's_add_u32 s{sPR}, s{sPR}, s{sT0}')
    sel_layer(A, sT1, L.HOP_M)
    A(f's_lshr_b32 s{sMW}, s{sH}, 2')
    A(f's_lshl_b32 s{sMW}, s{sMW}, 10')
    A(f's_add_u32 s{sMW}, s{sMW}, s{sT1}')
    A(f's_lshl_b32 s{sT0}, s{sW}, 8')
    A(f's_add_u32 s{sMW}, s{sMW}, s{sT0}')
    A(f's_and_b32 s{sT0}, s{sH}, 3')
    A(f's_lshl_b32 s{sT0}, s{sT0}, 6')
    A(f's_add_u32 s{sMW}, s{sMW}, s{sT0}')
    A(f's_lshl_b32 s{sMR}, s{sW}, 11')
    A(f's_add_u32 s{sMR}, s{sMR}, s{sT1}')
    A(f's_mov_b32 s{sSLOTP}, 262144')
    A(f's_mov_b32 s{sSLOTM}, 8192')
    A(f's_mov_b32 s{sSTEP}, 0')
    A(f'v_mov_b32 v{rTAG}, 1')
    A(f'v_lshrrev_b32 v{rT0}, 4, v{vLANE}')
    A(f'v_bfe_u32 v{rT1}, v{vLANE}, 1, 3')
    A(f'v_and_b32 v{rT2}, 1, v{vLANE}')
    A(f'v_lshlrev_b32 v{rT1}, 10, v{rT1}')
    A(f'v_lshl_add_u32 v{rT1}, v{rT0}, 3, v{rT1}')
    A(f'v_lshl_add_u32 v{rT1}, v{rT2}, 2, v{rT1}')
    A(f's_lshl_b32 s{sT0}, s{sW}, 8')
    for f in range(2):
        for d in range(4):
            A(f'buffer_load_dword v{WK_+4*f+d}, v{rT1}, s[{SRD_M0}:{SRD_M0+3}], s{sT0} offen offset:{f*128 + d*32}')
    if wait_kv:
        wait_kv(first=True)
    kv_prefetch(A, 'k')
    kv_prefetch(A, 'v')
    A(f's_mov_b32 s{sT0}, 0x05040100')
    A(f's_mov_b32 s{sT1}, 0x07060302')
    A('s_waitcnt vmcnt(4)')
    for f in range(2):
        b = WK_ + 4 * f
        A(f'v_perm_b32 v{VA+4*f+0}, v{b+1}, v{b+0}, s{sT0}')
        A(f'v_perm_b32 v{VA+4*f+1}, v{b+3}, v{b+2}, s{sT0}')
        A(f'v_perm_b32 v{VA+4*f+2}, v{b+1}, v{b+0}, s{sT1}')
        A(f'v_perm_b32 v{VA+4*f+3}, v{b+3}, v{b+2}, s{sT1}')
    zero(A, AC, 24)

    A.label('rec_step')
    A(f'ds_write_b128 v{rX}, {v(VA,4)} offset:{MEMIMG}')
    A(f'ds_write_b128 v{rX}, {v(VA+4,4)} offset:{MEMIMG+1024}')
    for k in range(2):
        smf(A, AC + 0, VA + 4 * k, wq(0, k))
        smf(A, AC + 4, VA + 4 * k, wq(1, k))
        if k == 0:
            A('s_waitcnt lgkmcnt(0)')
            A('s_barrier')
            for kk in range(2, 8):
                A(f'ds_read_b128 {v(VA+4*kk,4)}, v{rX + kk // 2} offset:{MEMIMG + (kk % 2) * 1024}')
        smf(A, AC + 8, VA + 4 * k, wk(0, k))
        smf(A, AC + 12, VA + 4 * k, wk(1, k))
    for k in range(2, 8):
        A(f's_waitcnt lgkmcnt({7 - k})')
        smf(A, AC + 0, VA + 4 * k, wq(0, k))
        smf(A, AC + 4, VA + 4 * k, wq(1, k))
        smf(A, AC + 8, VA + 4 * k, wk(0, k))
        smf(A, AC + 12, VA + 4 * k, wk(1, k))
    vq = [(u, k) for k in range(8) for u in range(2)]

    def vs(n):
        for _ in range(n):
            if vq:
                u, k = vq.pop(0)
                smf(A, AC + 16 + 4 * u, VA + 4 * k, wv(u, k))
    vs(4)
    A.nop(4)
    for t in range(4):
        b = AC + 4 * t
        A(f'v_add_f32 v{b}, v{b}, v{b+1}')
        A(f'v_add_f32 v{b+2}, v{b+2}, v{b+3}')
        A(f'v_cvt_pk_bf16_f32 v{b}, v{b}, v{b+2}')
        off = (t // 2) * 640 + (t % 2) * 32
        A(f'ds_write_b16 v{rQW}, v{b} offset:{off}')
        A(f'ds_write_b16_d16_hi v{rQW}, v{b} offset:{off + RS}')
    vs(2)
    A('s_waitcnt lgkmcnt(0)')
    QFr, KMFr, SA = WK_, WK_ + 4, WK_ + 8
    A(f'ds_read_b128 {v(QFr,4)}, v{rQR}')
    A(f'ds_read_b128 {v(KMFr,4)}, v{rKR} offset:640')
    vs(2)
    A('s_waitcnt vmcnt(0) lgkmcnt(0)')
    A(f'v_mfma_f32_16x16x32_bf16 {v(SA,4)}, {v(KF,4)}, {v(QFr,4)}, 0')
    A(f'v_mfma_f32_16x16x32_bf16 {v(SA+4,4)}, {v(KF+4,4)}, {v(QFr,4)}, 0')
    A(f'v_mfma_f32_16x16x32_bf16 {v(SA+8,4)}, {v(KMFr,4)}, {v(QFr,4)}, 0')
    A(f'buffer_store_dwordx4 {v(KMFr,4)}, v{rKMS}, {ws}, s{sKMo} offen sc1')
    vs(4)
    A.nop(4)
    A(f'ds_write_b128 v{rX}, {v(SA,4)} offset:{SX1}')
    A(f'ds_write_b128 v{rX}, {v(SA+4,4)} offset:{SX1+1024}')
    A(f'ds_write_b64 v{rX}, {v(SA+8,2)} offset:{SX2}')
    vs(2)
    A('s_waitcnt lgkmcnt(0)')
    A('s_barrier')
    XR = [AC, AC + 8, WK_]
    X2 = [SA + 10, SA + 12, SA + 14]
    for j in range(3):
        A(f'ds_read_b128 {v(XR[j],4)}, v{rX+1+j} offset:{SX1}')
        A(f'ds_read_b128 {v(XR[j]+4,4)}, v{rX+1+j} offset:{SX1+1024}')
        A(f'ds_read_b64 {v(X2[j],2)}, v{rX+1+j} offset:{SX2}')
    vs(16)
    A.nop(8)
    VMP = rT4
    for u in range(2):
        b = AC + 16 + 4 * u
        A(f'v_add_f32 v{b}, v{b}, v{b+1}')
        A(f'v_add_f32 v{b+2}, v{b+2}, v{b+3}')
        A(f'v_cvt_pk_bf16_f32 v{VMP+2*u}, v{b}, v{b+2}')
        A(f'v_mov_b32 v{VMP+2*u+1}, 0')
    A(f's_add_u32 s{sT0}, s{sKMo}, s{sVMd}')
    for u in range(2):
        A(f'buffer_store_dword v{VMP+2*u}, v{rVMS}, {ws}, s{sT0} offen offset:{u*256} sc1')
    A(f's_cmp_eq_u32 s{sSTEP}, {L.NSEG-1}')
    A('s_cbranch_scc1 rec_done')
    A(f's_add_u32 s{sKV}, s{sKV}, {32*8192}')
    A(f's_add_u32 s{sKMo}, s{sKMo}, {32*2048}')
    if wait_kv:
        wait_kv(first=False)
    kv_prefetch(A, 'k')
    frags = [(ct, k2) for ct in range(8) for k2 in range(2)]

    def wo_rd(i):
        ct, k2 = frags[i]
        b = VA + 8 * (i % 4)
        for hh in range(2):
            A(f'ds_read_b128 {v(b+4*hh,4)}, v{rWO} offset:{k2*16384 + ct*2048 + hh*1024}')
    for i in range(4):
        wo_rd(i)
    A('s_waitcnt lgkmcnt(8)')
    for r in range(8):
        A(f'v_add_f32 v{SA+r}, v{SA+r}, v{XR[0]+r}')
        A(f'v_add_f32 v{XR[1]+r}, v{XR[1]+r}, v{XR[2]+r}')
    for r in range(2):
        A(f'v_add_f32 v{SA+8+r}, v{SA+8+r}, v{X2[0]+r}')
        A(f'v_add_f32 v{X2[1]+r}, v{X2[1]+r}, v{X2[2]+r}')
    for r in range(8):
        A(f'v_add_f32 v{SA+r}, v{SA+r}, v{XR[1]+r}')
    for r in range(2):
        A(f'v_add_f32 v{SA+8+r}, v{SA+8+r}, v{X2[1]+r}')
    A(f'v_max3_f32 v{rT0}, v{SA}, v{SA+1}, v{SA+2}')
    A(f'v_max3_f32 v{rT1}, v{SA+3}, v{SA+4}, v{SA+5}')
    A(f'v_max3_f32 v{rT0}, v{rT0}, v{SA+6}, v{SA+7}')
    A(f'v_max3_f32 v{rT1}, v{rT1}, v{SA+8}, v{SA+9}')
    A(f'v_max_f32 v{rT0}, v{rT0}, v{rT1}')

    def xred(op):
        A(f'v_mov_b32 v{rT1}, v{rT0}')
        A.nop(2)
        A(f'v_permlane16_swap_b32 v{rT0}, v{rT1}')
        A.nop(1)
        A(f'{op} v{rT0}, v{rT0}, v{rT1}')
        A(f'v_mov_b32 v{rT1}, v{rT0}')
        A.nop(2)
        A(f'v_permlane32_swap_b32 v{rT0}, v{rT1}')
        A.nop(1)
        A(f'{op} v{rT0}, v{rT0}, v{rT1}')
    xred('v_max_f32')
    A(f'v_mul_f32 v{rT0}, s{sSCL}, v{rT0}')
    for r in range(10):
        A(f'v_fma_f32 v{SA+r}, v{SA+r}, s{sSCL}, -v{rT0}')
    for r in range(10):
        A(f'v_exp_f32 v{SA+r}, v{SA+r}')
    WA = [AC + 4 * i for i in range(6)] + [WK_, WK_ + 4]
    zero(A, AC, 24)
    zero(A, WK_, 8)
    A(f'v_add_f32 v{rT0}, v{SA}, v{SA+1}')
    A(f'v_add_f32 v{rT1}, v{SA+2}, v{SA+3}')
    for r in range(4, 10, 2):
        A(f'v_add_f32 v{rT0}, v{rT0}, v{SA+r}')
        A(f'v_add_f32 v{rT1}, v{rT1}, v{SA+r+1}')
    A(f'v_add_f32 v{rT0}, v{rT0}, v{rT1}')
    xred('v_add_f32')
    A(f'v_rcp_f32 v{rT0}, v{rT0}')
    A.nop(1)
    for r in range(10):
        A(f'v_mul_f32 v{SA+r}, v{SA+r}, v{rT0}')
    PFr = SA + 10
    assert PFr % 2 == 0
    for i in range(4):
        A(f'v_cvt_pk_bf16_f32 v{PFr+i}, v{SA+2*i}, v{SA+2*i+1}')
    A(f'v_cvt_pk_bf16_f32 v{PFr+4}, v{SA+8}, v{SA+9}')
    A(f'v_mov_b32 v{PFr+5}, 0')
    A.nop(2)
    OA = SA
    for u in range(2):
        A(f'v_mfma_f32_16x16x32_bf16 {v(OA+4*u,4)}, {v(VFr+4*u,4)}, {v(PFr,4)}, 0')
    for u in range(2):
        A(f'v_mfma_f32_16x16x16_bf16 {v(OA+4*u,4)}, {v(VMP+2*u,2)}, {v(PFr+4,2)}, {v(OA+4*u,4)}')
    kv_prefetch(A, 'v')
    A.nop(8)
    for i in range(4):
        A(f'v_cvt_pk_bf16_f32 v{rT0+i}, v{OA+2*i}, v{OA+2*i+1}')
    A(f'ds_write_b128 v{rOW}, {v(rT0,4)}')
    A('s_waitcnt lgkmcnt(0)')
    A('s_barrier')
    OF = SA
    A(f'ds_read_b128 {v(OF,4)}, v{rL16} offset:{OIMG}')
    A(f'ds_read_b128 {v(OF+4,4)}, v{rL16} offset:{OIMG+1024}')
    A('s_waitcnt lgkmcnt(0)')
    PKT = SA + 8
    issued = 4
    for i in range(16):
        ct, k2 = frags[i]
        if i >= 4:
            A(f's_waitcnt lgkmcnt({2 * (issued - i - 1)})')
        smf(A, WA[ct], OF + 4 * k2, v(VA + 8 * (i % 4), 8))
        if issued < 16:
            wo_rd(issued)
            issued += 1
        if i == 11:
            A.nop(2)
            for t in range(4):
                b = WA[t]
                A(f'v_add_f32 v{b}, v{b}, v{b+1}')
                A(f'v_add_f32 v{b+2}, v{b+2}, v{b+3}')
                A(f'v_cvt_pk_bf16_f32 v{PKT+t}, v{b}, v{b+2}')
                A(f'v_and_or_b32 v{PKT+t}, v{PKT+t}, s{sMASK}, v{rTAG}')
            hop_store(A, [f'buffer_store_dwordx4 {v(PKT,4)}, v{rL16}, {ws}, s{sPW} offen'])
    A.nop(8)
    for t in range(4, 8):
        b = WA[t]
        A(f'v_add_f32 v{b}, v{b}, v{b+1}')
        A(f'v_add_f32 v{b+2}, v{b+2}, v{b+3}')
        A(f'v_cvt_pk_bf16_f32 v{PKT+t}, v{b}, v{b+2}')
        A(f'v_and_or_b32 v{PKT+t}, v{PKT+t}, s{sMASK}, v{rTAG}')
    hop_store(A, [f'buffer_store_dwordx4 {v(PKT+4,4)}, v{rL16}, {ws}, s{sPW} offen offset:1024'])
    zero(A, AC, 24)
    if signal:
        signal()
    A(f's_add_u32 s{sT0}, s{sPR}, 131072')
    PR = VA + 8
    poll(A, list(range(PR, PR + 8)),
         [f'buffer_load_dwordx4 {v(PR,4)}, v{rPR}, {ws}, s{sPR} offen sc1',
          f'buffer_load_dwordx4 {v(PR+4,4)}, v{rPR}, {ws}, s{sT0} offen sc1'], 'p1')
    RA = WK_
    A(f'v_mfma_f32_16x16x32_bf16 {v(RA,4)}, {v(rSEL,4)}, {v(PR,4)}, 0')
    A(f'v_mfma_f32_16x16x32_bf16 {v(RA,4)}, {v(rSEL,4)}, {v(PR+4,4)}, {v(RA,4)}')
    A.nop(8)
    for r in range(4):
        A(f'v_add_f32_dpp v{RA+r}, v{RA+r}, v{RA+r} row_ror:4 row_mask:0xf bank_mask:0xf')
    for r in range(4):
        A(f'v_add_f32_dpp v{RA+r}, v{RA+r}, v{RA+r} row_ror:8 row_mask:0xf bank_mask:0xf')
    A(f'v_cvt_pk_bf16_f32 v{rT0}, v{RA}, v{RA+1}')
    A(f'v_cvt_pk_bf16_f32 v{rT1}, v{RA+2}, v{RA+3}')
    A(f'v_and_or_b32 v{rT0}, v{rT0}, s{sMASK}, v{rTAG}')
    A(f'v_and_or_b32 v{rT1}, v{rT1}, s{sMASK}, v{rTAG}')
    A('s_mov_b64 exec, 0x000f000f')
    hop_store(A, [f'buffer_store_dwordx2 {v(rT0,2)}, v{rMS}, {ws}, s{sMW} offen'])
    A('s_mov_b64 exec, -1')
    poll(A, list(range(VA, VA + 8)),
         [f'buffer_load_dwordx4 {v(VA,4)}, v{rL16}, {ws}, s{sMR} offen sc1',
          f'buffer_load_dwordx4 {v(VA+4,4)}, v{rL16}, {ws}, s{sMR} offen offset:1024 sc1'], 'p2')
    A(f's_add_u32 s{sPW}, s{sPW}, s{sSLOTP}')
    A(f's_add_u32 s{sPR}, s{sPR}, s{sSLOTP}')
    A(f's_add_u32 s{sMW}, s{sMW}, s{sSLOTM}')
    A(f's_add_u32 s{sMR}, s{sMR}, s{sSLOTM}')
    A(f's_sub_u32 s{sSLOTP}, 0, s{sSLOTP}')
    A(f's_sub_u32 s{sSLOTM}, 0, s{sSLOTM}')
    A(f's_and_b32 s{sT0}, s{sSTEP}, 1')
    A(f'v_xor_b32 v{rTAG}, s{sT0}, v{rTAG}')
    A(f's_add_u32 s{sSTEP}, s{sSTEP}, 1')
    A('s_branch rec_step')
    A.label('rec_done')
    if signal:
        signal(last=True)
    A('s_endpgm')
```

```python
from asmlib import *
import layout as L
from bulk import *

XV = 16
XR = 48
PB = 64
PK = 192
PK2 = 208
vRow, vPW, vPD = 3, 4, 9
sU = 84
sMSK = 85


def rnd_bf16(A, r, t):
    A(f'v_cvt_pk_bf16_f32 v{t}, v{r}, v{r}')
    A(f'v_lshlrev_b32 v{r}, 16, v{t}')


def rowsum(A, r, t):
    A.nop(2)
    A(f'v_add_f32_dpp v{r}, v{r}, v{r} row_ror:4 row_mask:0xf bank_mask:0xf')
    A.nop(2)
    A(f'v_add_f32_dpp v{r}, v{r}, v{r} row_ror:8 row_mask:0xf bank_mask:0xf')
    A(f'v_mov_b32 v{t}, v{r}')
    A.nop(2)
    A(f'v_permlane16_swap_b32 v{r}, v{t}')
    A.nop(1)
    A(f'v_add_f32 v{r}, v{r}, v{t}')
    A(f'v_mov_b32 v{t}, v{r}')
    A.nop(2)
    A(f'v_permlane32_swap_b32 v{r}, v{t}')
    A.nop(1)
    A(f'v_add_f32 v{r}, v{r}, v{t}')


def rln_consts(A):
    A(f'v_and_b32 v{vT0}, 3, v{vLANE}')
    A(f'v_lshrrev_b32 v{vT1}, 2, v{vLANE}')
    A(f'v_lshlrev_b32 v{vT2}, 4, v{vT1}')
    A(f'v_lshl_add_u32 v{vRow}, v{vT0}, 10, v{vT2}')
    A(f'v_lshlrev_b32 v{vT2}, 4, v{vT0}')
    A(f'v_lshl_add_u32 v{vPW}, v{vT1}, 9, v{vT2}')
    A(f'v_lshl_add_u32 v{vPD}, v{vT1}, 10, v{vT2}')
    A(f's_mov_b32 s{sMSK}, 0xffff0000')


def unpack(A, dst, src, n):
    for i in range(n):
        A(f'v_lshlrev_b32 v{dst+2*i}, 16, v{src+i}')
        A(f'v_and_b32 v{dst+2*i+1}, s{sMSK}, v{src+i}')


def rln_unit(A, mode, lay):
    ws = f's[{SRD_WS}:{SRD_WS+3}]'
    A(f's_lshl_b32 s{sT0}, s{sU}, 12')
    if mode == 'ln1' or (mode == 'wo' and lay == 0):
        rs, rb = f's[{SRD_X}:{SRD_X+3}]', 0
    elif mode == 'wo':
        rs, rb = ws, L.X2
    else:
        rs, rb = ws, L.X1[lay]
    A(f's_add_u32 s{sT1}, s{sT0}, {rb}')
    for i in range(4):
        A(f'buffer_load_dwordx4 {v(XR+4*i,4)}, v{vRow}, {rs}, s{sT1} offen offset:{i*256} sc1')
    A(f's_lshr_b32 s{sT2}, s{sU}, 3')
    A(f's_and_b32 s{sT3}, s{sU}, 7')
    A(f's_lshl_b32 s{sT3}, s{sT3}, 6')
    if mode == 'wo':
        A(f's_lshl_b32 s{sT2}, s{sT2}, 18')
        A(f's_add_u32 s{sT2}, s{sT2}, s{sT3}')
        A(f's_add_u32 s{sT2}, s{sT2}, {L.PW[lay]}')
        for k in range(8):
            for i in range(4):
                A(f'buffer_load_dwordx4 {v(PB+(k*4+i)*4,4)}, v{vPW}, {ws}, s{sT2} offen sc1')
                A(f's_add_u32 s{sT2}, s{sT2}, 8192')
        for k in range(8):
            A(f's_waitcnt vmcnt({(7-k)*4})')
            if k == 0:
                unpack(A, XV, PB, 16)
            else:
                for d in range(16):
                    src = PB + k * 16 + d
                    A(f'v_lshlrev_b32 v{vT0}, 16, v{src}')
                    A(f'v_and_b32 v{vT1}, s{sMSK}, v{src}')
                    A(f'v_add_f32 v{XV+2*d}, v{XV+2*d}, v{vT0}')
                    A(f'v_add_f32 v{XV+2*d+1}, v{XV+2*d+1}, v{vT1}')
    elif mode == 'down':
        A(f's_mul_i32 s{sT2}, s{sT2}, {3*65536}')
        A(f's_add_u32 s{sT2}, s{sT2}, s{sT3}')
        A(f's_add_u32 s{sT2}, s{sT2}, {L.PD[lay]}')
        for k in range(3):
            for i in range(4):
                for hb in range(2):
                    A(f'buffer_load_dwordx4 {v(PB+k*32+i*8+hb*4,4)}, v{vPD}, {ws}, s{sT2} offen offset:{hb*512} sc1')
                A(f's_add_u32 s{sT2}, s{sT2}, 16384')
        A('s_waitcnt vmcnt(8)')
        for r in range(32):
            A(f'v_add_f32 v{XV+r}, v{PB+r}, v{PB+32+r}')
        A('s_waitcnt vmcnt(0)')
        for r in range(32):
            A(f'v_add_f32 v{XV+r}, v{XV+r}, v{PB+64+r}')
    if mode == 'ln1':
        A('s_waitcnt vmcnt(0)')
        unpack(A, XV, XR, 16)
    else:
        for d in range(16):
            A(f'v_cvt_pk_bf16_f32 v{PK+d}, v{XV+2*d}, v{XV+2*d+1}')
        unpack(A, XV, PK, 16)
        unpack(A, PB, XR, 16)
        for r in range(32):
            A(f'v_add_f32 v{XV+r}, v{XV+r}, v{PB+r}')
        for d in range(16):
            A(f'v_cvt_pk_bf16_f32 v{PK+d}, v{XV+2*d}, v{XV+2*d+1}')
        if mode == 'wo':
            os_, ob = ws, L.X1[lay]
        elif lay == 0:
            os_, ob = ws, L.X2
        else:
            os_, ob = f's[{SRD_OUT}:{SRD_OUT+3}]', 0
        A(f's_add_u32 s{sT1}, s{sT0}, {ob}')
        for i in range(4):
            A(f'buffer_store_dwordx4 {v(PK+4*i,4)}, v{vRow}, {os_}, s{sT1} offen offset:{i*256} sc1')
        if mode == 'down' and lay == 1:
            return
        unpack(A, XV, PK, 16)
    A(f'v_add_f32 v{vT0}, v{XV}, v{XV+1}')
    A(f'v_add_f32 v{vT1}, v{XV+2}, v{XV+3}')
    for r in range(4, 32, 2):
        A(f'v_add_f32 v{vT0}, v{vT0}, v{XV+r}')
        A(f'v_add_f32 v{vT1}, v{vT1}, v{XV+r+1}')
    A(f'v_add_f32 v{vT0}, v{vT0}, v{vT1}')
    rowsum(A, vT0, vT1)
    A(f'v_mul_f32 v{vT0}, 0x3b000000, v{vT0}')
    A(f'v_mov_b32 v{vT2}, 0')
    A(f'v_mov_b32 v{vT3}, 0')
    for r in range(0, 32, 2):
        A(f'v_sub_f32 v{PB}, v{XV+r}, v{vT0}')
        A(f'v_sub_f32 v{PB+1}, v{XV+r+1}, v{vT0}')
        A(f'v_fmac_f32 v{vT2}, v{PB}, v{PB}')
        A(f'v_fmac_f32 v{vT3}, v{PB+1}, v{PB+1}')
    A(f'v_add_f32 v{vT2}, v{vT2}, v{vT3}')
    rowsum(A, vT2, vT1)
    A(f'v_mul_f32 v{vT2}, 0x3b000000, v{vT2}')
    rnd_bf16(A, vT2, vT1)
    A(f'v_add_f32 v{vT2}, 0x3727c5ac, v{vT2}')
    rnd_bf16(A, vT2, vT1)
    A(f'v_sqrt_f32 v{vT2}, v{vT2}')
    A.nop(1)
    rnd_bf16(A, vT2, vT1)
    A(f'v_rcp_f32 v{vT2}, v{vT2}')
    rnd_bf16(A, vT0, vT1)
    for r in range(32):
        A(f'v_sub_f32 v{XV+r}, v{XV+r}, v{vT0}')
    for d in range(16):
        A(f'v_cvt_pk_bf16_f32 v{PK2+d}, v{XV+2*d}, v{XV+2*d+1}')
    unpack(A, XV, PK2, 16)
    for r in range(32):
        A(f'v_mul_f32 v{XV+r}, v{XV+r}, v{vT2}')
    for d in range(16):
        A(f'v_cvt_pk_bf16_f32 v{PK2+d}, v{XV+2*d}, v{XV+2*d+1}')
    ob = {'ln1': L.XN[0], 'wo': L.XF[lay], 'down': L.XN[1]}[mode]
    A(f's_add_u32 s{sT1}, s{sT0}, {ob}')
    for i in range(4):
        A(f'buffer_store_dwordx4 {v(PK2+4*i,4)}, v{vRow}, {ws}, s{sT1} offen offset:{i*256} sc1')
```

```python
import sys
from asmlib import *
import layout as L
from bulk import *
import qa, rln, rec

NAME = 'interleave_layers__memory_aug_recurrent_mem_tr__swiglu_ffn__prompt'
LDS = 163840
A = Asm()
kernels = []
launches = []


def kernel(label):
    A.raw('.p2align 8')
    A.raw(f'.globl {label}')
    A.raw(f'.type {label},@function')
    A.label(label)
    kernels.append(label)


def bulk_entry(label, role, lay, nc, nrep_log2):
    kernel(label)
    n = nc << nrep_log2
    A(f's_cmp_ge_u32 s2, {n}')
    A('s_cbranch_scc1 k_exit')
    prologue(A)
    A(f's_lshr_b32 s{sRC}, s2, {nrep_log2}')
    A(f's_and_b32 s{sREP}, s2, {(1 << nrep_log2) - 1}')
    A(f's_mov_b32 s{sNREP}, {1 << nrep_log2}')
    A(f's_mov_b32 s{sLAY}, {lay}')
    A(f's_branch {role}')
    launches.append((label, n, LDS))


def rln_entry(label, mode, lay):
    kernel(label)
    n = 280 if mode == 'ln1' else 128
    A(f's_cmp_ge_u32 s2, {n}')
    A('s_cbranch_scc1 k_exit')
    prologue(A)
    if mode == 'ln1':
        assert L.ZERO_BYTES == 280 * 4096
        for r in range(4):
            A(f'v_mov_b32 v{16+r}, 0')
        A(f'v_lshlrev_b32 v{vT0}, 4, v0')
        A(f's_lshl_b32 s{sT0}, s2, 12')
        A(f's_add_u32 s{sT0}, s{sT0}, {L.ZERO_BASE}')
        A(f'buffer_store_dwordx4 v[16:19], v{vT0}, s[{SRD_WS}:{SRD_WS+3}], s{sT0} offen')
        A('s_cmp_ge_u32 s2, 128')
        A('s_cbranch_scc1 k_exit')
        A.nop(2)
    rln.rln_consts(A)
    A(f's_lshl_b32 s{rln.sU}, s2, 2')
    A(f's_add_u32 s{rln.sU}, s{rln.sU}, s{sW}')
    rln.rln_unit(A, mode, lay)
    A('s_endpgm')
    launches.append((label, n, 0))


def rec_entry(label, lay):
    kernel(label)
    A('s_cmp_ge_u32 s2, 256')
    A('s_cbranch_scc1 k_exit')
    prologue(A)
    A(f's_mov_b32 s{sLAY}, {lay}')
    A('s_branch rec_register')
    launches.append((label, 256, LDS))


def rec_register():
    dbg = f's[{SRD_DBG}:{SRD_DBG+3}]'
    A.label('rec_register')
    A(f's_cmp_lg_u32 s{sW}, 0')
    A('s_cbranch_scc1 reg_wait')
    A(f's_getreg_b32 s{sT0}, hwreg(HW_REG_XCC_ID)')
    A(f's_and_b32 s{sT0}, s{sT0}, 7')
    A(f's_lshl_b32 s{sT1}, s{sT0}, 2')
    A(f'v_mov_b32 v10, s{sT1}')
    A('v_mov_b32 v11, 1')
    A('v_mov_b32 v12, 64')
    A('v_mov_b32 v13, 1')
    A(f'v_lshlrev_b32 v14, 2, v{vLANE}')
    A('s_mov_b64 exec, 1')
    A(f'buffer_atomic_add v11, v10, {dbg}, 0 offen sc0')
    A('s_waitcnt vmcnt(0)')
    A(f'buffer_atomic_add v13, v12, {dbg}, 0 offen sc0')
    A('s_waitcnt vmcnt(0)')
    A(f'v_readfirstlane_b32 s{sT2}, v11')
    A(f'v_readfirstlane_b32 s{sT3}, v13')
    A(f's_mov_b32 s{sT4}, 0x400000')
    A.label('reg_poll')
    A(f'buffer_load_dword v15, v12, {dbg}, 0 offen sc1')
    A('s_waitcnt vmcnt(0)')
    A(f'v_readfirstlane_b32 s{sT5}, v15')
    A(f's_cmp_ge_u32 s{sT5}, 256')
    A('s_cbranch_scc1 reg_ok')
    A('s_sleep 2')
    A(f's_sub_u32 s{sT4}, s{sT4}, 1')
    A(f's_cmp_lg_u32 s{sT4}, 0')
    A('s_cbranch_scc1 reg_poll')
    A.label('reg_ok')
    A('s_mov_b64 exec, 0xff')
    A(f'buffer_load_dword v15, v14, {dbg}, 0 offen sc1')
    A('s_waitcnt vmcnt(0)')
    A('v_cmp_le_u32 vcc, 32, v15')
    A('s_mov_b64 exec, -1')
    A(f's_ff1_i32_b32 s{sT4}, vcc_lo')
    A(f's_cmp_eq_u32 s{sT4}, s{sT0}')
    A(f's_cselect_b32 s{sT2}, s{sT2}, 255')
    A(f's_cmp_eq_u32 s{sT4}, -1')
    A(f's_cselect_b32 s{sT2}, s{sT3}, s{sT2}')
    A(f's_cselect_b32 s{sT3}, 1, 0')
    A(f's_cmp_ge_u32 s{sT5}, 256')
    A(f's_cselect_b32 s{sT2}, s{sT2}, 255')
    A(f'v_mov_b32 v10, s{sT2}')
    A(f'v_mov_b32 v11, s{sT3}')
    A('v_mov_b32 v12, 0')
    A('ds_write_b64 v12, v[10:11]')
    A('s_waitcnt lgkmcnt(0)')
    A.label('reg_wait')
    A('s_barrier')
    A('v_mov_b32 v12, 0')
    A('ds_read_b64 v[10:11], v12')
    A('s_waitcnt lgkmcnt(0)')
    A(f'v_readfirstlane_b32 s{rec.sH}, v10')
    A(f'v_readfirstlane_b32 s{rec.sMODE}, v11')
    A('s_barrier')
    A(f's_cmp_ge_u32 s{rec.sH}, 32')
    A('s_cbranch_scc1 k_exit')
    A('s_branch role_rec')


rln_entry('init_kernel', 'ln1', 0)
for lay in range(2):
    bulk_entry(f'kv{lay}_kernel', 'role_kv', lay, 32, 3)
    rec_entry(f'rec{lay}_kernel', lay)
    bulk_entry(f'qa{lay}_kernel', 'role_qa', lay, 16, 4)
    bulk_entry(f'wo{lay}_kernel', 'role_wo', lay, 16, 4)
    rln_entry(f'rw{lay}_kernel', 'wo', lay)
    bulk_entry(f'up{lay}_kernel', 'role_up', lay, 11, 4)
    bulk_entry(f'dn{lay}_kernel', 'role_down', lay, 6, 5)
    rln_entry(f'rd{lay}_kernel', 'down', lay)
A.label('k_exit')
A('s_endpgm')
rec_register()
role_kv(A)
qa.role_qa(A)
role_wo(A)
role_up(A)
role_down(A)
rec.role_rec(A)

hdr = open('cdna_kernels/' + NAME + '.s.ref').read().split('\n')
head = [l for l in hdr if l.startswith(';') and '@launch' not in l]
out = '\n'.join(head) + '\n'
for (k, n, lds) in launches:
    out += f'; @launch kernel={k} grid=({n},1,1) block=(256,1,1) lds={lds}\n'
out += '.amdgcn_target "amdgcn-amd-amdhsa--gfx950"\n.text\n'
out += A.text()
out += '.section .rodata,"a"\n'
for k in kernels:
    out += f'''.p2align 6
.amdhsa_kernel {k}
  .amdhsa_next_free_vgpr 512
  .amdhsa_next_free_sgpr 102
  .amdhsa_accum_offset 256
  .amdhsa_group_segment_fixed_size 0
  .amdhsa_kernarg_size 112
  .amdhsa_user_sgpr_count 2
  .amdhsa_user_sgpr_kernarg_segment_ptr 1
  .amdhsa_system_sgpr_workgroup_id_x 1
.end_amdhsa_kernel
'''
dst = sys.argv[1] if len(sys.argv) > 1 else 'cdna_kernels/' + NAME + '.s'
open(dst, 'w').write(out)
print('wrote', dst, len(out), 'bytes')
```
